```python
import torch

def _softmax(x, axis=-1):
    return torch.softmax(x, dim=axis)
def _gelu(x):
    return torch.nn.functional.gelu(x, approximate="tanh")
def _silu(x):
    return torch.nn.functional.silu(x)
def _sigmoid(x):
    return torch.sigmoid(x)
def _layernorm(x, axis=-1, eps=1e-5):
    m = x.mean(dim=axis, keepdim=True)
    v = x.var(dim=axis, keepdim=True, unbiased=False)
    return (x - m) / torch.sqrt(v + eps)
def _scatter_add(tgt, idx, src, axis=0):
    return tgt.clone().index_add_(axis, idx, src)
def _segment_sum(src, seg, n):
    out = torch.zeros((n,) + src.shape[1:], dtype=src.dtype)
    return out.index_add_(0, seg, src)
def _pad(x, pw):
    flat = tuple(v for pair in reversed(pw) for v in pair)
    return torch.nn.functional.pad(x, flat)

kernel_name = 'standalone__hybrid_graph_tf_graphgps__graph'

def setup_inputs():

    _w = (lambda a: (lambda t: t.to(torch.bfloat16) if t.is_floating_point() else t)(torch.as_tensor(a)))
    N, deg, D = 10000, 32, 128
    E = N * deg
    src = (lambda lo, hi, *s: torch.randint(lo, hi, s))(0, N, E).to(torch.int64)
    dst = (lambda lo, hi, *s: torch.randint(lo, hi, s))(0, N, E).to(torch.int64)
    deg_cnt = torch.bincount(dst, minlength=N).to(float) + 1.0
    sc = 1.0 / float(D) ** 0.5
    return {
        "x": _w((lambda *s: torch.randn(*s, dtype=torch.bfloat16) * 0.05)(N, D)),
        "src": _w(src),
        "dst": _w(dst),
        "deg_inv": _w((1.0 / deg_cnt).to(float)),
        "w_msg": _w((lambda *s: torch.randn(*s, dtype=torch.bfloat16) * 0.2)(D, D) * sc),
        "wq": _w((lambda *s: torch.randn(*s, dtype=torch.bfloat16) * 1.6)(D, D) * sc),
        "wk": _w((lambda *s: torch.randn(*s, dtype=torch.bfloat16) * 1.6)(D, D) * sc),
        "wv": _w((lambda *s: torch.randn(*s, dtype=torch.bfloat16) * 0.2)(D, D) * sc),
        "w_out": _w((lambda *s: torch.randn(*s, dtype=torch.bfloat16) * 0.2)(D, D) * sc),
    }

def reference(x, src, dst, deg_inv, w_msg, wq, wk, wv, w_out):
    N, D = x.shape[0], x.shape[1]
    h = _layernorm(x, axis=-1)
    m_e = torch.einsum('nd,de->ne', h, w_msg)
    h_local = _segment_sum(m_e[src], dst, N) * deg_inv[:, None]
    q = torch.einsum('nd,de->ne', h, wq)
    k = torch.einsum('nd,de->ne', h, wk)
    v = torch.einsum('nd,de->ne', h, wv)
    logits = torch.einsum('id,jd->ij', q, k) / (float(D) ** 0.5)
    attn = _softmax(logits, axis=-1)
    h_global = torch.einsum('ij,jd->id', attn, v)
    y = torch.einsum('nd,de->ne', h_local + h_global, w_out)
    return x + y
```

```python
class Asm:
    def __init__(self):
        self.lines = []
        self._lbl = 0
    def __call__(self, s):
        for l in s.strip('\n').split('\n'):
            self.lines.append('    ' + l.strip() if l.strip() and not l.strip().endswith(':') else l.strip())
    def raw(self, s):
        self.lines.append(s)
    def label(self, name):
        self.lines.append(name + ':')
    def newlabel(self, base):
        self._lbl += 1
        return f'L_{base}_{self._lbl}'
    def comment(self, s):
        self.lines.append('    ; ' + s)
    def text(self):
        return '\n'.join(self.lines) + '\n'

def vr(a, n=1):
    return f'v{a}' if n == 1 else f'v[{a}:{a+n-1}]'
def ar(a, n=1):
    return f'a{a}' if n == 1 else f'a[{a}:{a+n-1}]'
def sr(a, n=1):
    return f's{a}' if n == 1 else f's[{a}:{a+n-1}]'

def srd(A, d, base_lo, nbytes, off=0):
    if off:
        A(f's_add_u32 s{d}, s{base_lo}, {hex(off)}')
        A(f's_addc_u32 s{d+1}, s{base_lo+1}, 0')
    else:
        A(f's_mov_b32 s{d}, s{base_lo}')
        A(f's_mov_b32 s{d+1}, s{base_lo+1}')
    A(f's_mov_b32 s{d+2}, {hex(nbytes)}')
    A(f's_mov_b32 s{d+3}, 0x00020000')

def kernel_begin(A, name):
    A.raw('.text')
    A.raw(f'.globl {name}')
    A.raw('.p2align 8')
    A.raw(f'.type {name},@function')
    A.raw(f'{name}:')

def kernel_desc(A, name, vgpr, accum, sgpr=102):
    A.raw('.section .rodata,"a"')
    A.raw('.p2align 6')
    A.raw(f'.amdhsa_kernel {name}')
    A.raw(f'  .amdhsa_next_free_vgpr {vgpr}')
    A.raw(f'  .amdhsa_next_free_sgpr {sgpr}')
    A.raw(f'  .amdhsa_accum_offset {accum}')
    A.raw('  .amdhsa_group_segment_fixed_size 0')
    A.raw('  .amdhsa_kernarg_size 96')
    A.raw('  .amdhsa_user_sgpr_count 2')
    A.raw('  .amdhsa_user_sgpr_kernarg_segment_ptr 1')
    A.raw('  .amdhsa_system_sgpr_workgroup_id_x 1')
    A.raw('.end_amdhsa_kernel')
```

```python
N = 10000
D = 128
E = 320000
NT = 314
NPAIR = 157
NQB = 40
VL = NPAIR + 1
NWG2 = 256
WS_H    = 0x001000
H_BYTES = NT * 8192
WS_Q    = 0x280000
Q_BYTES = NT * 8192
WS_W12  = 0x500000
W12_BYTES = 65536
WS_CELL = 0x520000
NCHUNK = 157
CHUNK = 2048
CELL_BYTES = NCHUNK * 1024
WS_ENT  = 0x560000
ENT_BYTES = NCHUNK * CHUNK * 4
WS_ML   = 0x700000
NSLOT = 296
ML_BYTES = NSLOT * 2048
WS_P    = 0x800000
P_BYTES = NSLOT * 65536
RNG = 40
NRNG = 250
CSCALE = 1.4426950408889634 / (128.0 ** 0.5)

def B(w):
    return (w * 395) >> 4

def segments(w):
    b0, b1 = B(w), B(w + 1)
    out = []
    qb = b0 // VL
    lo = max(b0, VL * qb + 1); hi = min(b1, VL * qb + VL)
    out.append((qb, lo - VL * qb - 1, hi - lo))
    if b1 > VL * (qb + 1) + 1:
        out.append((qb + 1, 0, b1 - VL * (qb + 1) - 1))
    return out

def first_w(qb):
    return (2528 * qb + 31) // 395
def last_w(qb):
    return (2528 * qb + 2527) // 395

def check_partition():
    cover = {}
    mx = 0
    for w in range(NWG2):
        segs = segments(w)
        mx = max(mx, sum(s[2] for s in segs) + (len(segs) - 1))
        for (qb, st, n) in segs:
            assert n >= 1
            assert st != NPAIR - 1, (w, segs)
            cover.setdefault(qb, []).append((w, st, n))
    cnts = []
    for qb in range(NQB):
        l = cover[qb]
        pos = 0
        for (w, st, n) in l:
            assert st == pos
            pos += n
        assert pos == NPAIR
        assert l[0][0] == first_w(qb) and l[-1][0] == last_w(qb), (qb, l)
        cnts.append(len(l))
    return mx, min(cnts), max(cnts)

if __name__ == '__main__':
    print(check_partition())
    print([segments(w) for w in range(10)])
```

```python
from asmlib import *
from consts import *
import struct

def f2u(f):
    return struct.unpack('<I', struct.pack('<f', f))[0]

K1_NAME = 'gps_prep_kernel'
K1_LN = NT
K1_BIN0 = NT
K1_W0 = NT + NCHUNK
K1_GRID = NT + NCHUNK + 2
K1_LDS = 49152

def swap23_v(A, dst, src, t0, t1):
    A(f'v_and_b32 v{t0}, 4, v{src}')
    A(f'v_and_b32 v{t1}, 8, v{src}')
    A(f'v_and_b32 v{dst}, 0x13, v{src}')
    A(f'v_lshl_or_b32 v{dst}, v{t0}, 1, v{dst}')
    A(f'v_lshrrev_b32 v{t1}, 1, v{t1}')
    A(f'v_or_b32 v{dst}, v{dst}, v{t1}')

def dma_colblock(A, srdw, vl, s_wave, lds_base_s, vtmp, stmp):
    A(f'v_lshrrev_b32 v{vtmp}, 2, v{vl}')
    A(f'v_lshlrev_b32 v{vtmp}, 8, v{vtmp}')
    A(f'v_and_b32 v{vtmp+1}, 3, v{vl}')
    A(f'v_lshl_add_u32 v{vtmp}, v{vtmp+1}, 4, v{vtmp}')
    A(f's_lshl_b32 s{stmp}, s{s_wave}, 6')
    A(f's_mov_b32 m0, s{lds_base_s}')
    A('s_nop 0')
    for i in range(8):
        A(f'buffer_load_dwordx4 v{vtmp}, s[{srdw}:{srdw+3}], s{stmp} offen lds')
        if i < 7:
            A(f's_add_u32 s{stmp}, s{stmp}, 4096')
            A(f's_add_u32 m0, m0, 1024')
            A('s_nop 0')

def tr_addr(A, dst, vl, t0, t1, swap):
    A(f'v_lshrrev_b32 v{t0}, 5, v{vl}')
    A(f'v_lshlrev_b32 v{dst}, 9, v{t0}')
    A(f'v_bfe_u32 v{t0}, v{vl}, 2, 2')
    A(f'v_lshl_add_u32 v{dst}, v{t0}, 6, v{dst}')
    A(f'v_bfe_u32 v{t0}, v{vl}, 4, 1')
    A(f'v_lshl_add_u32 v{dst}, v{t0}, 5, v{dst}')
    if swap:
        A(f'v_and_b32 v{t0}, 1, v{vl}')
        A(f'v_lshl_add_u32 v{dst}, v{t0}, 4, v{dst}')
        A(f'v_bfe_u32 v{t0}, v{vl}, 1, 1')
        A(f'v_lshl_add_u32 v{dst}, v{t0}, 3, v{dst}')
    else:
        A(f'v_and_b32 v{t0}, 3, v{vl}')
        A(f'v_lshl_add_u32 v{dst}, v{t0}, 3, v{dst}')

def gen_k1(A):
    kernel_begin(A, K1_NAME)
    A(f's_cmp_ge_u32 s2, {K1_GRID}')
    A('s_cbranch_scc1 K1_END')
    A('s_load_dwordx4 s[4:7], s[0:1], 0')
    A('s_load_dwordx2 s[8:9], s[0:1], 16')
    A('s_load_dwordx8 s[12:19], s[0:1], 32')
    A('s_load_dwordx2 s[20:21], s[0:1], 64')
    A('s_load_dwordx2 s[22:23], s[0:1], 88')
    A('v_and_b32 v1, 63, v0')
    A('v_lshrrev_b32 v2, 6, v0')
    A('s_nop 0')
    A('v_readfirstlane_b32 s3, v2')
    A(f's_cmp_ge_u32 s2, {K1_W0}')
    A('s_cbranch_scc1 K1_WROLE')
    A(f's_cmp_ge_u32 s2, {K1_BIN0}')
    A('s_cbranch_scc1 K1_BIN')
    LDS_WQ, LDS_H, LDS_QT = 0, 32768, 40960
    A('s_waitcnt lgkmcnt(0)')
    srd(A, 24, 4, N * 256)
    srd(A, 28, 14, 32768)
    srd(A, 32, 16, 32768)
    srd(A, 36, 22, H_BYTES, WS_H)
    srd(A, 40, 22, Q_BYTES, WS_Q)
    A('s_lshl_b32 s44, s2, 13')
    A('v_lshl_add_u32 v3, v0, 5, s44')
    A('buffer_load_dwordx4 v[8:11], v3, s[24:27], 0 offen')
    A('buffer_load_dwordx4 v[12:15], v3, s[24:27], 0 offen offset:16')
    A('s_lshl_b32 s45, s3, 13')
    dma_colblock(A, 28, 1, 3, 45, 4, 46)
    A('v_and_b32 v4, 31, v1')
    swap23_v(A, 5, 4, 6, 7)
    A('s_lshl_b32 s46, s3, 5')
    A('v_add_u32 v5, s46, v5')
    A('v_lshlrev_b32 v5, 8, v5')
    A('v_lshrrev_b32 v6, 5, v1')
    A('v_lshl_add_u32 v5, v6, 4, v5')
    for s in range(8):
        A(f'buffer_load_dwordx4 v[{64+4*s}:{67+4*s}], v5, s[32:35], 0 offen offset:{32*s}')
    A('v_lshlrev_b32 v7, 4, v6')
    A(f'v_add_u32 v7, {127*256}, v7')
    for s in range(8):
        A(f'buffer_load_dwordx4 v[{96+4*s}:{99+4*s}], v7, s[32:35], 0 offen offset:{32*s}')
    A('s_waitcnt vmcnt(24)')
    for i in range(8):
        A(f'v_lshlrev_b32 v{16+2*i}, 16, v{8+i}')
        A(f'v_and_b32 v{17+2*i}, 0xffff0000, v{8+i}')
    for i in range(8):
        A(f'v_add_f32 v{32+i}, v{16+2*i}, v{17+2*i}')
    for i in range(4):
        A(f'v_add_f32 v{32+i}, v{32+i}, v{36+i}')
    A('v_add_f32 v32, v32, v34')
    A('v_add_f32 v33, v33, v35')
    A('v_add_f32 v32, v32, v33')
    def red8(r):
        A('s_nop 1')
        A(f'v_add_f32_dpp v{r}, v{r}, v{r} quad_perm:[1,0,3,2] row_mask:0xf bank_mask:0xf')
        A('s_nop 1')
        A(f'v_add_f32_dpp v{r}, v{r}, v{r} quad_perm:[2,3,0,1] row_mask:0xf bank_mask:0xf')
        A('s_nop 1')
        A(f'v_add_f32_dpp v{r}, v{r}, v{r} row_half_mirror row_mask:0xf bank_mask:0xf')
    red8(32)
    A(f'v_mul_f32 v32, {hex(f2u(1.0/128))}, v32')
    for i in range(16):
        A(f'v_sub_f32 v{16+i}, v{16+i}, v32')
    for i in range(4):
        A(f'v_mul_f32 v{36+i}, v{16+i}, v{16+i}')
    for i in range(4, 16):
        A(f'v_fmac_f32 v{36+(i&3)}, v{16+i}, v{16+i}')
    A('v_add_f32 v36, v36, v37')
    A('v_add_f32 v38, v38, v39')
    A('v_add_f32 v36, v36, v38')
    red8(36)
    A(f'v_mul_f32 v36, {hex(f2u(1.0/128))}, v36')
    def rbf(r):
        A(f'v_cvt_pk_bf16_f32 v{r}, v{r}, v{r}')
        A(f'v_and_b32 v{r}, 0xffff0000, v{r}')
    rbf(36)
    A(f'v_add_f32 v36, {hex(f2u(1e-5))}, v36')
    rbf(36)
    A('v_sqrt_f32 v36, v36')
    A('s_nop 0')
    rbf(36)
    A('v_rcp_f32 v36, v36')
    A('s_nop 0')
    for i in range(16):
        A(f'v_mul_f32 v{16+i}, v{16+i}, v36')
    for i in range(8):
        A(f'v_cvt_pk_bf16_f32 v{8+i}, v{16+2*i}, v{17+2*i}')
    A('v_and_b32 v32, 7, v0')
    A('v_lshrrev_b32 v33, 3, v0')
    A('v_xor_b32 v34, v32, v33')
    A('v_lshlrev_b32 v34, 4, v34')
    A('v_lshl_add_u32 v34, v32, 10, v34')
    A(f'ds_write_b128 v34, v[8:11] offset:{LDS_H}')
    A(f'ds_write_b128 v34, v[12:15] offset:{LDS_H+512}')
    A('s_lshl_b32 s46, s2, 5')
    A('v_add_u32 v33, s46, v33')
    A(f'v_cmp_gt_u32 vcc, {N}, v33')
    A('v_cmp_eq_u32 s[48:49], 7, v32')
    A('s_nop 1')
    A('s_and_b64 vcc, vcc, s[48:49]')
    A('v_and_b32 v35, 0xffff, v15')
    A('v_or_b32 v35, 0x3f800000, v35')
    A('v_mov_b32 v40, v12')
    A('v_mov_b32 v41, v13')
    A('v_mov_b32 v42, v14')
    A('v_cndmask_b32 v43, v15, v35, vcc')
    A('buffer_store_dwordx4 v[8:11], v3, s[36:39], 0 offen')
    A('buffer_store_dwordx4 v[40:43], v3, s[36:39], 0 offen offset:16')
    tr_addr(A, 44, 1, 45, 46, True)
    A('v_add_u32 v44, s45, v44')
    A('s_waitcnt vmcnt(18)')
    for s in range(8):
        for u in range(2):
            A(f'ds_read_b64_tr_b16 v[{128+4*s+2*u}:{129+4*s+2*u}], v44 offset:{LDS_WQ + s*1024 + u*256}')
    A('s_waitcnt lgkmcnt(0)')
    A('s_barrier')
    A('v_and_b32 v45, 31, v1')
    A('v_lshlrev_b32 v45, 4, v45')
    A('v_lshl_add_u32 v45, v6, 9, v45')
    for s in range(8):
        A(f'v_xor_b32 v46, {s*16}, v45')
        A(f'ds_read_b128 v[{160+4*s}:{163+4*s}], v46 offset:{LDS_H + s*1024}')
    for s in range(8):
        A(f's_waitcnt lgkmcnt({7-s})')
        c = '0' if s == 0 else 'v[16:31]'
        A(f'v_mfma_f32_32x32x16_bf16 v[16:31], v[{128+4*s}:{131+4*s}], v[{160+4*s}:{163+4*s}], {c}')
    A('s_nop 15')
    for i in range(8):
        A(f'v_cvt_pk_bf16_f32 v{8+i}, v{16+2*i}, v{17+2*i}')
    A('v_lshlrev_b32 v47, 4, v1')
    A('s_lshl_b32 s46, s3, 11')
    A('v_add_u32 v48, s46, v47')
    A(f'ds_write_b128 v48, v[8:11] offset:{LDS_QT}')
    A(f'ds_write_b128 v48, v[12:15] offset:{LDS_QT+1024}')
    A('s_waitcnt lgkmcnt(0)')
    A('s_barrier')
    for s in range(8):
        A(f'ds_read_b128 v[{160+4*s}:{163+4*s}], v47 offset:{LDS_QT + s*1024}')
    A('s_waitcnt vmcnt(2)')
    for s in range(8):
        A(f's_waitcnt lgkmcnt({7-s})')
        c = '0' if s == 0 else 'v[16:31]'
        A(f'v_mfma_f32_32x32x16_bf16 v[16:31], v[{64+4*s}:{67+4*s}], v[{160+4*s}:{163+4*s}], {c}')
        c = '0' if s == 0 else 'v[48:63]'
        A(f'v_mfma_f32_32x32x16_bf16 v[48:63], v[{96+4*s}:{99+4*s}], v[{160+4*s}:{163+4*s}], {c}')
    A(f's_mov_b32 s47, {hex(f2u(CSCALE))}')
    A('s_nop 15')
    A('v_mul_f32 v48, s47, v48')
    for i in range(16):
        A(f'v_fma_f32 v{16+i}, v{16+i}, s47, -v48')
    for i in range(8):
        A(f'v_cvt_pk_bf16_f32 v{8+i}, v{16+2*i}, v{17+2*i}')
    A('s_add_u32 s46, s46, s44')
    A('v_add_u32 v47, s46, v47')
    A('buffer_store_dwordx4 v[8:11], v47, s[40:43], 0 offen')
    A('buffer_store_dwordx4 v[12:15], v47, s[40:43], 0 offen offset:1024')
    A('s_endpgm')
    A.label('K1_WROLE')
    A('s_waitcnt lgkmcnt(0)')
    A(f's_sub_u32 s44, s2, {K1_W0}')
    A('s_cmp_eq_u32 s44, 0')
    A('s_cselect_b32 s24, s18, s12')
    A('s_cselect_b32 s25, s19, s13')
    A('s_mov_b32 s26, 32768')
    A('s_mov_b32 s27, 0x00020000')
    srd(A, 28, 20, 32768)
    srd(A, 32, 22, W12_BYTES, WS_W12)
    A('s_lshl_b32 s45, s3, 13')
    dma_colblock(A, 28, 1, 3, 45, 4, 46)
    A('v_and_b32 v4, 31, v1')
    swap23_v(A, 5, 4, 6, 7)
    A('s_cmp_eq_u32 s44, 0')
    A('s_cselect_b64 vcc, -1, 0')
    A('v_cndmask_b32 v5, v5, v4, vcc')
    A('v_lshlrev_b32 v5, 8, v5')
    A('v_lshrrev_b32 v6, 5, v1')
    A('v_lshl_add_u32 v5, v6, 4, v5')
    for T in range(4):
        if T:
            A('v_add_u32 v5, 8192, v5')
        for s in range(8):
            r = 64 + 32 * T + 4 * s
            A(f'buffer_load_dwordx4 v[{r}:{r+3}], v5, s[24:27], 0 offen offset:{32*s}')
    tr_addr(A, 44, 1, 45, 46, False)
    A('v_add_u32 v44, s45, v44')
    A('s_waitcnt vmcnt(32)')
    for s in range(8):
        for u in range(2):
            A(f'ds_read_b64_tr_b16 v[{8+4*s+2*u}:{9+4*s+2*u}], v44 offset:{s*1024 + u*256}')
    A('s_waitcnt lgkmcnt(0)')
    for T in range(4):
        A(f's_waitcnt vmcnt({24-8*T})')
        for s in range(8):
            r = 64 + 32 * T + 4 * s
            d = 192 + 16 * T
            c = '0' if s == 0 else f'v[{d}:{d+15}]'
            A(f'v_mfma_f32_32x32x16_bf16 v[{d}:{d+15}], v[{r}:{r+3}], v[{8+4*s}:{11+4*s}], {c}')
    A('s_nop 15')
    A('v_mov_b32 v40, v255')
    A('v_mov_b32 v41, v255')
    A('s_nop 1')
    A('v_permlane32_swap_b32 v40, v41')
    A('s_nop 1')
    for i in range(64):
        A(f'v_sub_f32 v{192+i}, v{192+i}, v41')
    for i in range(32):
        A(f'v_cvt_pk_bf16_f32 v{64+i}, v{192+2*i}, v{193+2*i}')
    A('v_bfe_u32 v42, v1, 4, 1')
    A('v_lshlrev_b32 v42, 13, v42')
    A('v_and_b32 v43, 15, v1')
    A('v_lshl_add_u32 v42, v43, 4, v42')
    A('v_lshl_add_u32 v42, v6, 8, v42')
    A('s_lshl_b32 s46, s3, 14')
    A('s_lshl_b32 s47, s44, 12')
    A('s_add_u32 s46, s46, s47')
    A('v_add_u32 v42, s46, v42')
    for T in range(4):
        for t in range(2):
            r = 64 + 8 * T + 4 * t
            A(f'buffer_store_dwordx4 v[{r}:{r+3}], v42, s[32:35], 0 offen offset:{T*1024 + t*512}')
    A('s_endpgm')
    A.label('K1_BIN')
    A('s_waitcnt lgkmcnt(0)')
    srd(A, 24, 6, E * 4)
    srd(A, 28, 8, E * 4)
    srd(A, 32, 22, CELL_BYTES, WS_CELL)
    srd(A, 36, 22, ENT_BYTES, WS_ENT)
    A(f's_sub_u32 s44, s2, {K1_BIN0}')
    A('s_lshl_b32 s45, s44, 13')
    A('v_lshl_add_u32 v3, v0, 5, s45')
    A('buffer_load_dwordx4 v[8:11], v3, s[28:31], 0 offen')
    A('buffer_load_dwordx4 v[12:15], v3, s[28:31], 0 offen offset:16')
    A('buffer_load_dwordx4 v[16:19], v3, s[24:27], 0 offen')
    A('buffer_load_dwordx4 v[20:23], v3, s[24:27], 0 offen offset:16')
    A('v_lshlrev_b32 v4, 2, v0')
    A('v_mov_b32 v5, 0')
    A('ds_write_b32 v4, v5')
    A('v_mov_b32 v6, 1')
    A('s_mov_b32 s46, 52429')
    A('s_waitcnt lgkmcnt(0)')
    A('s_barrier')
    A(f'v_cmp_gt_u32 vcc, {E*4}, v3')
    A('s_and_saveexec_b64 s[48:49], vcc')
    A('s_waitcnt vmcnt(2)')
    for i in range(8):
        A(f'v_mul_u32_u24 v{24+i}, s46, v{8+i}')
        A(f'v_lshrrev_b32 v{24+i}, 21, v{24+i}')
        A(f'v_min_u32 v{24+i}, 255, v{24+i}')
        A(f'v_mul_u32_u24 v7, {RNG}, v{24+i}')
        A(f'v_sub_u32 v{8+i}, v{8+i}, v7')
        A(f'v_lshlrev_b32 v{24+i}, 2, v{24+i}')
        A(f'ds_add_rtn_u32 v{32+i}, v{24+i}, v6')
    A('s_waitcnt vmcnt(0)')
    for i in range(8):
        A(f'v_lshlrev_b32 v{16+i}, 8, v{16+i}')
        A(f'v_lshl_or_b32 v{16+i}, v{8+i}, 24, v{16+i}')
    A('s_mov_b64 exec, s[48:49]')
    A('s_waitcnt lgkmcnt(0)')
    A('s_barrier')
    A('ds_read_b32 v40, v4')
    A('s_waitcnt lgkmcnt(0)')
    A('v_mov_b32 v41, v40')
    for sh in (1, 2, 4, 8):
        A('s_nop 1')
        A(f'v_add_u32_dpp v41, v41, v41 row_shr:{sh} row_mask:0xf bank_mask:0xf bound_ctrl:0')
    A('s_nop 1')
    A('v_add_u32_dpp v41, v41, v41 row_bcast:15 row_mask:0xa bank_mask:0xf')
    A('s_nop 1')
    A('v_add_u32_dpp v41, v41, v41 row_bcast:31 row_mask:0xc bank_mask:0xf')
    A('s_nop 1')
    A('v_readlane_b32 s50, v41, 63')
    A('s_lshl_b32 s51, s3, 2')
    A('v_mov_b32 v42, s51')
    A('s_nop 1')
    A('v_mov_b32 v43, s50')
    A('ds_write_b32 v42, v43 offset:2048')
    A('s_waitcnt lgkmcnt(0)')
    A('s_barrier')
    A('v_mov_b32 v42, 0')
    A('ds_read_b128 v[44:47], v42 offset:2048')
    A('v_sub_u32 v41, v41, v40')
    A('s_waitcnt lgkmcnt(0)')
    A('s_cmp_ge_u32 s3, 1')
    A('s_cselect_b32 s52, -1, 0')
    A('v_and_b32 v44, s52, v44')
    A('s_cmp_ge_u32 s3, 2')
    A('s_cselect_b32 s52, -1, 0')
    A('v_and_b32 v45, s52, v45')
    A('s_cmp_ge_u32 s3, 3')
    A('s_cselect_b32 s52, -1, 0')
    A('v_and_b32 v46, s52, v46')
    A('v_add3_u32 v41, v41, v44, v45')
    A('v_add_u32 v41, v41, v46')
    A('ds_write_b32 v4, v41 offset:1024')
    A('v_lshl_or_b32 v43, v40, 16, v41')
    A('s_lshl_b32 s50, s44, 10')
    A('v_add_u32 v42, s50, v4')
    A('buffer_store_dword v43, v42, s[32:35], 0 offen')
    A('s_waitcnt lgkmcnt(0)')
    A('s_barrier')
    A('s_and_saveexec_b64 s[48:49], vcc')
    A('s_cbranch_execz K1_END')
    for i in range(8):
        A(f'ds_read_b32 v{40+i}, v{24+i} offset:1024')
    for i in range(8):
        A(f's_waitcnt lgkmcnt({7-i})')
        A(f'v_add_u32 v{40+i}, v{40+i}, v{32+i}')
        A(f'v_lshl_add_u32 v{40+i}, v{40+i}, 2, s45')
        A(f'buffer_store_dword v{16+i}, v{40+i}, s[36:39], 0 offen')
    A.label('K1_END')
    A('s_endpgm')
    kernel_desc(A, K1_NAME, 256, 256, 64)
```

```python
from asmlib import *
from consts import *
from k1 import f2u

K2_NAME = 'gps_attn_kernel'
TS = 8320
PS = 2 * TS
RING = 4 * PS
SLOW0 = RING
K2_LDS = RING + 4 * TS

O = 0
S0, S1A, S1B = 128, 144, 160
P0A, P0B, P1 = 176, 184, 192
T = 200
KB, VB = 204, 208
KA, VA = 212, 216
DA, DB = 220, 221
L16 = 222
MN = 223
X = 226
AQ, AK, AV, AQ2 = 0, 64, 96, 128
sWAVE = 3
sH, sQ, sP, sML = 8, 12, 16, 20
sQB, sN, sN2 = 24, 25, 26
sDP, sDS, sDO = 27, 28, 29
sV, sK = 30, 31
sCNT = 32
sHI = 34
sT = 36

def Oreg(u, dt): return O + (u * 4 + dt) * 16

def mfma_qk(u, s, sreg):
    c = '0' if s == 0 else f'v[{sreg}:{sreg+15}]'
    q = AQ + (u * 8 + s) * 4
    k = AK + s * 4
    return f'v_mfma_f32_32x32x16_bf16 v[{sreg}:{sreg+15}], a[{k}:{k+3}], a[{q}:{q+3}], {c}'

def mfma_pv(u, t, dt, preg):
    o = Oreg(u, dt)
    v = AV + (t * 4 + dt) * 4
    p = preg + 4 * t
    return f'v_mfma_f32_32x32x16_bf16 v[{o}:{o+15}], a[{v}:{v+3}], v[{p}:{p+3}], v[{o}:{o+15}]'

def kread(s, tile, base=KA):
    k = AK + s * 4
    return f'ds_read_b128 a[{k}:{k+3}], v{base + (s >> 1)} offset:{tile * TS + (s & 1) * 32}'

def vread(t, dt, up, tile, base=VA):
    v = AV + (t * 4 + dt) * 4 + 2 * up
    return f'ds_read_b64_tr_b16 a[{v}:{v+1}], v{base + dt} offset:{tile * TS + t * 4160 + up * 2080}'

def exp_i(sreg, i):
    return f'v_exp_f32_e64 v{T + (i & 3)}, v{sreg + i}'

def cvt_k(preg, k):
    a = T + ((2 * k) & 3)
    return f'v_cvt_pk_bf16_f32 v{preg + k}, v{a}, v{a + 1}'

def softmax_gaps(sreg, preg):
    g = [[] for _ in range(17)]
    for i in range(16):
        g[i].append(exp_i(sreg, i))
    for k in range(8):
        g[2 * k + 2].insert(0, cvt_k(preg, k))
    return g

def emit_phase(A, mf, gaps):
    for i, m in enumerate(mf):
        A(m)
        for f in gaps[i]:
            A(f)

def dma_ops(tile):
    ops = []
    if tile == 0:
        ops.append([f's_mov_b32 m0, s{sDS}', f's_lshl_b32 s{sDO}, s{sDP}, 14'])
    else:
        ops.append([f's_add_u32 m0, s{sDS}, {TS}', f's_add_u32 s{sDO}, s{sDO}, 8192'])
    ops.append([f'buffer_load_dwordx4 v{DA}, s[{sH}:{sH+3}], s{sDO} offen lds'])
    ops.append([f'buffer_load_dwordx4 v{DB}, s[{sH}:{sH+3}], s{sDO} offen offset:1040 lds'])
    return ops

def dma_advance():
    return [f's_add_u32 s{sDS}, s{sDS}, {PS}',
            f's_cmp_ge_u32 s{sDS}, {RING}',
            f's_cselect_b32 s{sT}, {RING}, 0',
            f's_sub_u32 s{sDS}, s{sDS}, s{sT}',
            f's_add_u32 s{sDP}, s{sDP}, 1',
            f's_cmp_eq_u32 s{sDP}, {NPAIR}',
            f's_cselect_b32 s{sDP}, 0, s{sDP}']

def ring_advance_s():
    return [f's_mov_b32 s{sV}, s{sK}',
            f's_add_u32 s{sK}, s{sK}, {PS}',
            f's_cmp_eq_u32 s{sK}, {RING}',
            f's_cselect_b32 s{sK}, 0, s{sK}']

def phase_A(A, par, carry, do_qk=True):
    s1_cur = S1A if par == 0 else S1B
    s1_nxt = S1B if par == 0 else S1A
    mf = [mfma_qk(0, s, S0) for s in range(8)] + [mfma_qk(1, s, s1_nxt) for s in range(8)]
    g = softmax_gaps(s1_cur, P1)
    g[0] = carry + g[0]
    reads = [vread(t, dt, up, par) for t in range(2) for dt in range(4) for up in range(2)]
    plan = [1, 2, 1, 2, 1, 2, 1, 2, 1, 1, 1, 1]
    k = 0
    for gi, c in enumerate(plan):
        for _ in range(c):
            g[gi].append(reads[k]); k += 1
    if do_qk:
        emit_phase(A, mf, g)
    else:
        for gi in range(16):
            for f in g[gi]:
                A(f)
                if f.startswith('v_exp'):
                    A('s_nop 0')
    return g[16]

def phase_B(A, par, carry, barrier, kreads=True, softmax=True, extra=None):
    p0_cur = P0A if par == 0 else P0B
    p0_nxt = P0B if par == 0 else P0A
    mf = [mfma_pv(0, t, dt, p0_cur) for t in range(2) for dt in range(4)] + \
         [mfma_pv(1, t, dt, P1) for t in range(2) for dt in range(4)]
    g = softmax_gaps(S0, p0_nxt) if softmax else [[] for _ in range(17)]
    A('s_waitcnt lgkmcnt(0)')
    g[0] = carry + g[0]
    if barrier:
        g[0] += ['s_waitcnt vmcnt(4)', 's_barrier']
    if kreads:
        for s in range(8):
            g[1 + s].append(kread(s, par))
    d = dma_ops(par)
    g[9] += d[0]
    g[10] += d[1]
    g[12] += d[2]
    if par == 1:
        adv = dma_advance()
        g[13] += adv[:4]
        g[14] += adv[4:]
        ra = ring_advance_s()
        g[1] += ra[:1]
        g[3] += [f'v_add_u32 v{VA}, s{sV}, v{VB}', f'v_add_u32 v{VA+1}, s{sV}, v{VB+1}']
        g[5] += [f'v_add_u32 v{VA+2}, s{sV}, v{VB+2}', f'v_add_u32 v{VA+3}, s{sV}, v{VB+3}']
        g[7] += ra[1:]
        g[11] += [f'v_add_u32 v{KA}, s{sK}, v{KB}', f'v_add_u32 v{KA+1}, s{sK}, v{KB+1}']
        g[15] += [f'v_add_u32 v{KA+2}, s{sK}, v{KB+2}', f'v_add_u32 v{KA+3}, s{sK}, v{KB+3}']
    if extra:
        for gi, l in extra.items():
            g[gi] += l
    emit_phase(A, mf, g)
    return g[16]

def q_loads(A, bank, sqb):
    A(f's_lshl_b32 s{sT+1}, s{sqb}, 16')
    A(f's_lshl_b32 s{sT+2}, s{sWAVE}, 14')
    A(f's_add_u32 s{sT+1}, s{sT+1}, s{sT+2}')
    A(f'v_add_u32 v{X}, s{sT+1}, v{L16}')
    for grp in range(4):
        if grp:
            A(f'v_add_u32 v{X}, 4096, v{X}')
        for i in range(4):
            a = bank + (grp * 4 + i) * 4
            A(f'buffer_load_dwordx4 a[{a}:{a+3}], v{X}, s[{sQ}:{sQ+3}], 0 offen offset:{i*1024}')

def gen_k2(A):
    kernel_begin(A, K2_NAME)
    A(f's_cmp_ge_u32 s2, {NWG2}')
    A('s_cbranch_scc1 K2_END')
    A('s_load_dwordx2 s[4:5], s[0:1], 88')
    A(f'v_and_b32 v{X+1}, 63, v0')
    A(f'v_lshrrev_b32 v{X+2}, 6, v0')
    A(f'v_lshlrev_b32 v{L16}, 4, v{X+1}')
    A(f'v_readfirstlane_b32 s{sWAVE}, v{X+2}')
    A(f's_mul_i32 s{sT}, s2, 395')
    A(f's_add_u32 s{sT+1}, s{sT}, 395')
    A(f's_lshr_b32 s{sT}, s{sT}, 4')
    A(f's_lshr_b32 s{sT+1}, s{sT+1}, 4')
    magic = (1 << 32) // VL + 1
    A(f's_mul_hi_u32 s{sQB}, s{sT}, {hex(magic)}')
    A(f's_mul_i32 s{sT+2}, s{sQB}, {VL}')
    A(f's_add_u32 s{sT+3}, s{sT+2}, 1')
    A(f's_max_u32 s{sT+4}, s{sT}, s{sT+3}')
    A(f's_add_u32 s{sT+5}, s{sT+2}, {VL}')
    A(f's_min_u32 s{sT+6}, s{sT+1}, s{sT+5}')
    A(f's_sub_u32 s{sN}, s{sT+6}, s{sT+4}')
    A(f's_sub_u32 s{sDP}, s{sT+4}, s{sT+3}')
    A(f's_add_u32 s{sT+5}, s{sT+5}, 1')
    A(f's_max_u32 s{sT+6}, s{sT+1}, s{sT+5}')
    A(f's_sub_u32 s{sN2}, s{sT+6}, s{sT+5}')
    A(f's_mov_b32 s{sHI}, 0')
    A(f's_mov_b32 s{sHI+1}, -1')
    A('s_waitcnt lgkmcnt(0)')
    srd(A, sH, 4, H_BYTES + 16, WS_H - 16)
    srd(A, sQ, 4, Q_BYTES, WS_Q)
    srd(A, sP, 4, P_BYTES, WS_P)
    srd(A, sML, 4, ML_BYTES, WS_ML)
    q_loads(A, AQ, sQB)
    ln = X + 1
    A(f'v_lshrrev_b32 v{X+2}, 4, v{ln}')
    A(f'v_and_b32 v{X+3}, 15, v{ln}')
    A(f'v_lshlrev_b32 v{X+4}, 2, v{X+2}')
    A(f'v_xor_b32 v{X+3}, v{X+3}, v{X+4}')
    A(f'v_lshlrev_b32 v{X+3}, 4, v{X+3}')
    A(f'v_lshl_add_u32 v{X+3}, v{X+2}, 8, v{X+3}')
    A(f's_lshl_b32 s{sT}, s{sWAVE}, 11')
    A(f'v_add_u32 v{DB}, s{sT}, v{X+3}')
    A(f'v_add_u32 v{DA}, 16, v{DB}')
    A(f's_mul_i32 s{sDS}, s{sWAVE}, 2080')
    for p in range(3):
        for tile in range(2):
            d = dma_ops(tile)
            for l in d[0]: A(l)
            A('s_nop 0')
            A(d[1][0]); A(d[2][0])
        for l in dma_advance(): A(l)
    A(f'v_and_b32 v{X+2}, 31, v{ln}')
    A(f'v_lshrrev_b32 v{X+3}, 5, v{ln}')
    A(f'v_lshlrev_b32 v{X+4}, 8, v{X+2}')
    A(f'v_lshrrev_b32 v{X+5}, 2, v{X+2}')
    A(f'v_add_u32 v{X+5}, v{X+5}, v{X+3}')
    A(f'v_lshl_add_u32 v{X+4}, v{X+5}, 4, v{X+4}')
    A(f'v_and_b32 v{X+5}, 3, v{ln}')
    for j in range(4):
        A(f'v_xor_b32 v{X+6}, {j}, v{X+5}')
        A(f'v_lshl_add_u32 v{KB+j}, v{X+6}, 6, v{X+4}')
    A(f'v_bfe_u32 v{X+5}, v{ln}, 2, 2')
    A(f'v_lshl_add_u32 v{X+4}, v{X+3}, 2, v{X+5}')
    A(f'v_lshlrev_b32 v{X+4}, 8, v{X+4}')
    A(f'v_lshl_add_u32 v{X+4}, v{X+3}, 4, v{X+4}')
    A(f'v_bfe_u32 v{X+6}, v{ln}, 4, 1')
    A(f'v_lshl_add_u32 v{X+4}, v{X+6}, 5, v{X+4}')
    A(f'v_and_b32 v{X+6}, 3, v{ln}')
    A(f'v_lshl_add_u32 v{X+4}, v{X+6}, 3, v{X+4}')
    for dt in range(4):
        A(f'v_xor_b32 v{X+6}, {dt}, v{X+5}')
        A(f'v_lshl_add_u32 v{VB+dt}, v{X+6}, 6, v{X+4}')
    A(f's_mov_b32 s{sV}, 0')
    A(f's_mov_b32 s{sK}, {PS}')
    for i in range(128):
        A(f'v_mov_b32 v{O+i}, 0')
    A('s_waitcnt vmcnt(8)')
    A('s_barrier')
    A.label('K2_SEG')
    for j in range(4):
        A(f'v_add_u32 v{KA+j}, s{sV}, v{KB+j}')
        A(f'v_add_u32 v{VA+j}, s{sV}, v{VB+j}')
    for s in range(8):
        A(kread(s, 0))
    for s in range(8):
        A(f's_waitcnt lgkmcnt({7-s})')
        A(mfma_qk(0, s, S0))
    for s in range(8):
        A(mfma_qk(1, s, S1A))
        A(kread(s, 1))
    for j in range(4):
        A(f'v_add_u32 v{KA+j}, s{sK}, v{KB+j}')
    A('s_nop 7')
    for u, sreg in ((0, S0), (1, S1A)):
        m = X + 8 + u
        if u == 1:
            A('s_nop 3')
        A(f'v_max3_f32 v{m}, v{sreg}, v{sreg+1}, v{sreg+2}')
        for i in range(3, 15, 2):
            A(f'v_max3_f32 v{m}, v{m}, v{sreg+i}, v{sreg+i+1}')
        A(f'v_max_f32 v{m}, v{m}, v{sreg+15}')
        A(f'v_mov_b32 v{X+10}, v{m}')
        A('s_nop 1')
        A(f'v_permlane32_swap_b32 v{m}, v{X+10}')
        A('s_nop 1')
        A(f'v_max_f32 v{m}, v{m}, v{X+10}')
        A(f'v_cvt_pk_bf16_f32 v{m}, -v{m}, -v{m}')
        A(f'v_and_b32 v{MN+u}, 0xffff0000, v{m}')
        aq = AQ + (u * 8 + 7) * 4 + 3
        A(f'v_accvgpr_read_b32 v{X+11}, a{aq}')
        A(f'v_and_b32 v{X+12}, 0xffff, v{X+11}')
        A(f'v_or_b32 v{X+12}, v{X+12}, v{MN+u}')
        A(f'v_cndmask_b32 v{X+11}, v{X+11}, v{X+12}, s[{sHI}:{sHI+1}]')
        A(f'v_accvgpr_write_b32 a{aq}, v{X+11}')
        for i in range(16):
            A(f'v_add_f32 v{sreg+i}, v{sreg+i}, v{MN+u}')
    g = softmax_gaps(S0, P0A)
    for gi in range(17):
        for f in g[gi]:
            A(f)
            if f.startswith('v_exp'):
                A('s_nop 0')
    A(f's_sub_u32 s{sCNT}, s{sN}, 1')
    A(f's_cmp_eq_u32 s{sCNT}, 0')
    A('s_waitcnt lgkmcnt(0)')
    A('s_cbranch_scc1 K2_TAIL')
    A.raw('.p2align 6')
    A.label('K2_LOOP')
    c = phase_A(A, 0, [])
    c = phase_B(A, 0, c, True)
    A('s_waitcnt lgkmcnt(0)')
    c = phase_A(A, 1, c)
    c = phase_B(A, 1, c, False, extra={15: [f's_sub_u32 s{sCNT}, s{sCNT}, 1']})
    for f in c: A(f)
    A('s_waitcnt lgkmcnt(0)')
    A(f's_cmp_lg_u32 s{sCNT}, 0')
    A('s_cbranch_scc1 K2_LOOP')
    A.label('K2_TAIL')
    c = phase_A(A, 0, [])
    c = phase_B(A, 0, c, True, kreads=False)
    A(f's_cmp_eq_u32 s{sN2}, 0')
    A('s_cbranch_scc1 K2_NOQ')
    A(f's_add_u32 s{sT+3}, s{sQB}, 1')
    q_loads(A, AQ2, sT + 3)
    A.label('K2_NOQ')
    c = phase_A(A, 1, c, do_qk=False)
    for f in c: A(f)
    c = phase_B(A, 1, [], False, kreads=False, softmax=False)
    A(f's_add_u32 s{sT+1}, s2, s{sQB}')
    A(f's_lshl_b32 s{sT+2}, s{sT+1}, 16')
    A(f's_lshl_b32 s{sT+3}, s{sWAVE}, 14')
    A(f's_add_u32 s{sT+2}, s{sT+2}, s{sT+3}')
    A(f'v_add_u32 v{X}, s{sT+2}, v{L16}')
    A(f's_lshl_b32 s{sT+2}, s{sT+1}, 11')
    A(f's_lshl_b32 s{sT+3}, s{sWAVE}, 9')
    A(f's_add_u32 s{sT+2}, s{sT+2}, s{sT+3}')
    A(f's_sub_u32 s{sT+2}, s{sT+2}, 256')
    A(f'v_lshrrev_b32 v{X+1}, 1, v{L16}')
    A(f'v_add_u32 v{X+1}, s{sT+2}, v{X+1}')
    A('s_nop 7')
    A(f's_mov_b64 exec, s[{sHI}:{sHI+1}]')
    for u in range(2):
        A(f'v_sub_f32 v{X+2+2*u}, 0, v{MN+u}')
        A(f'v_mov_b32 v{X+3+2*u}, v{Oreg(u,3)+15}')
        A(f'buffer_store_dwordx2 v[{X+2+2*u}:{X+3+2*u}], v{X+1}, s[{sML}:{sML+3}], 0 offen offset:{u*256}')
    A('s_mov_b64 exec, -1')
    k = 0
    for u in range(2):
        for dt in range(4):
            for t in range(2):
                o = Oreg(u, dt) + 8 * t
                b = S0 + 4 * (k % 8)
                for i in range(4):
                    A(f'v_cvt_pk_bf16_f32 v{b+i}, v{o+2*i}, v{o+2*i+1}')
                if k and k % 4 == 0:
                    A(f'v_add_u32 v{X}, 4096, v{X}')
                A(f'buffer_store_dwordx4 v[{b}:{b+3}], v{X}, s[{sP}:{sP+3}], 0 offen offset:{(k%4)*1024}')
                k += 1
    A(f's_cmp_eq_u32 s{sN2}, 0')
    A('s_cbranch_scc1 K2_DONE')
    for i in range(128):
        A(f'v_mov_b32 v{O+i}, 0')
    A('s_waitcnt vmcnt(20)')
    for i in range(64):
        A(f'v_accvgpr_mov_b32 a{AQ+i}, a{AQ2+i}')
    A(f's_add_u32 s{sQB}, s{sQB}, 1')
    A(f's_mov_b32 s{sN}, s{sN2}')
    A(f's_mov_b32 s{sN2}, 0')
    A('s_branch K2_SEG')
    A.label('K2_DONE')
    A('s_waitcnt vmcnt(0)')
    A.label('K2_END')
    A('s_endpgm')
    kernel_desc(A, K2_NAME, 448, 256, 64)
```

```python
from asmlib import *
from consts import *
from k1 import f2u

K3_NAME = 'gps_final_kernel'
K3_GRID = NRNG
K3_BLOCK = 640
L_CNT, L_FLAG, L_LIST, L_Z = 0, 192, 256, 10496
ZP = 528
K3_LDS = L_Z + 48 * ZP
OOB = 0x7f000000
CAP = 64

LANE, CC, NODEA, LISTA = 1, 2, 3, 4
CELL, CNTV, EOFF = 5, 6, 7
ENT = 8
SLOT = 16
ACC = 24
TMP = 32
SA = 40
SB = 104
PD = 104
PM = 136
ZA = 152
TX = 160
sCELL, sENT, sH, sP, sML, sW, sX, sO, sDEG = 8, 12, 16, 20, 24, 28, 32, 36, 40
sWAVE = 3
sMASK = 44
sWIN, sMAX, sFIRST = 60, 61, 62
sT = 64

def issue_batch(A, base, k):
    for i in range(4):
        A(f'ds_read_b128 v[{base+16*i}:{base+16*i+3}], v{LISTA} offset:{k*64 + i*16}')
    for i in range(4):
        A(f's_waitcnt lgkmcnt({3-i})')
        q = base + 16 * i
        for j in (3, 2, 1, 0):
            A(f'v_add_u32 v{TMP+j}, v{q+j}, v{CC}')
        for j in range(4):
            A(f'buffer_load_dwordx4 v[{q+4*j}:{q+4*j+3}], v{TMP+j}, s[{sH}:{sH+3}], 0 offen')

def acc_batch(A, base, outstanding_after):
    for r in range(16):
        A(f's_waitcnt vmcnt({outstanding_after + 15 - r})')
        q = base + 4 * r
        for j in range(4):
            A(f'v_lshlrev_b32 v{TMP+4}, 16, v{q+j}')
            A(f'v_and_b32 v{TMP+5}, 0xffff0000, v{q+j}')
            A(f'v_add_f32 v{ACC+2*j}, v{ACC+2*j}, v{TMP+4}')
            A(f'v_add_f32 v{ACC+2*j+1}, v{ACC+2*j+1}, v{TMP+5}')

def gen_k3(A):
    kernel_begin(A, K3_NAME)
    A(f's_cmp_ge_u32 s2, {K3_GRID}')
    A('s_cbranch_scc1 K3_END')
    A('s_load_dwordx2 s[4:5], s[0:1], 88')
    A(f's_load_dwordx2 s[{sT}:{sT+1}], s[0:1], 0')
    A(f's_load_dwordx2 s[{sT+2}:{sT+3}], s[0:1], 24')
    A(f's_load_dwordx2 s[{sT+4}:{sT+5}], s[0:1], 72')
    A(f'v_and_b32 v{LANE}, 63, v0')
    A(f'v_lshrrev_b32 v{TMP}, 6, v0')
    A(f'v_lshrrev_b32 v{TMP+1}, 2, v0')
    A(f'v_readfirstlane_b32 s{sWAVE}, v{TMP}')
    A(f's_lshl_b32 s{sT+6}, s2, 2')
    A(f'v_lshl_add_u32 v{TMP+2}, v{TMP+1}, 10, s{sT+6}')
    A('s_waitcnt lgkmcnt(0)')
    srd(A, sCELL, 4, CELL_BYTES, WS_CELL)
    A(f'buffer_load_dword v{CELL}, v{TMP+2}, s[{sCELL}:{sCELL+3}], 0 offen')
    srd(A, sENT, 4, ENT_BYTES, WS_ENT)
    srd(A, sH, 4, H_BYTES, WS_H)
    srd(A, sP, 4, P_BYTES, WS_P)
    srd(A, sML, 4, ML_BYTES, WS_ML)
    srd(A, sW, 4, W12_BYTES, WS_W12)
    srd(A, sX, sT, N * 256)
    srd(A, sDEG, sT + 2, N * 2)
    srd(A, sO, sT + 4, N * 256)
    A(f'v_and_b32 v{CC}, 15, v0')
    A(f'v_lshlrev_b32 v{CC}, 4, v{CC}')
    A(f'v_lshrrev_b32 v{TMP+3}, 4, v0')
    A(f'v_lshlrev_b32 v{NODEA}, 2, v{TMP+3}')
    A(f'v_lshlrev_b32 v{LISTA}, 8, v{TMP+3}')
    A(f'v_add_u32 v{LISTA}, {L_LIST}, v{LISTA}')
    A(f'v_lshlrev_b32 v{EOFF}, 13, v{TMP+1}')
    for i in range(8):
        A(f'v_mov_b32 v{ACC+i}, 0')
    A(f's_mov_b32 s{sWIN}, 0')
    A(f's_mov_b32 s{sFIRST}, 1')
    A(f'v_mul_u32_u24 v{TX}, 1639, v0')
    A(f'v_lshrrev_b32 v{TX}, 16, v{TX}')
    A(f'v_mul_u32_u24 v{TX+1}, 40, v{TX}')
    A(f'v_sub_u32 v{TX+1}, v0, v{TX+1}')
    A(f's_mul_i32 s{sT+7}, s2, 40')
    A(f'v_add_u32 v{TX+2}, s{sT+7}, v{TX+1}')
    A(f's_lshr_b32 s{sT+8}, s{sT+7}, 8')
    magic = (1 << 32) // 395 + 1
    for k in range(2):
        qb = sT + 8
        if k:
            A(f's_add_u32 s{sT+9}, s{sT+8}, 1')
            qb = sT + 9
        A(f's_mul_i32 s{sT+10}, s{qb}, 2528')
        A(f's_add_u32 s{sT+11}, s{sT+10}, 31')
        A(f's_mul_hi_u32 s{sT+11}, s{sT+11}, {hex(magic)}')
        A(f's_add_u32 s{sT+10}, s{sT+10}, 2527')
        A(f's_mul_hi_u32 s{sT+10}, s{sT+10}, {hex(magic)}')
        A(f's_sub_u32 s{sT+14+k}, s{sT+10}, s{sT+11}')
        A(f's_add_u32 s{sT+12+k}, s{sT+11}, s{qb}')
    A(f'v_lshrrev_b32 v{TX+3}, 8, v{TX+2}')
    A(f'v_cmp_eq_u32 vcc, s{sT+8}, v{TX+3}')
    A(f'v_mov_b32 v{TX+3}, s{sT+13}')
    A(f'v_mov_b32 v{TX+4}, s{sT+12}')
    A(f'v_cndmask_b32 v{TX+3}, v{TX+3}, v{TX+4}, vcc')
    A(f'v_mov_b32 v{TX+4}, s{sT+15}')
    A(f'v_mov_b32 v{TX+5}, s{sT+14}')
    A(f'v_cndmask_b32 v{TX+4}, v{TX+4}, v{TX+5}, vcc')
    A(f'v_cmp_eq_u32 s[{sT+10}:{sT+11}], 7, v{TX+4}')
    A(f'v_and_b32 v{TX+5}, 255, v{TX+2}')
    A(f'v_lshlrev_b32 v{TX+6}, 3, v{TX+5}')
    A(f'v_lshl_add_u32 v{TX+6}, v{TX+3}, 11, v{TX+6}')
    A(f'v_lshrrev_b32 v{TX+7}, 5, v{TX+5}')
    A(f'v_lshlrev_b32 v{TX+7}, 13, v{TX+7}')
    A(f'v_lshl_add_u32 v{TX+7}, v{TX+3}, 16, v{TX+7}')
    A(f'v_lshl_add_u32 v{TX+7}, v{TX}, 9, v{TX+7}')
    A(f'v_and_b32 v{TX+5}, 31, v{TX+5}')
    A(f'v_lshl_add_u32 v{TX+7}, v{TX+5}, 4, v{TX+7}')
    A(f'v_mul_u32_u24 v{TX+1}, {ZP}, v{TX+1}')
    A(f'v_lshl_add_u32 v{TX+1}, v{TX}, 4, v{TX+1}')
    A.label('K3_RESET')
    A(f'v_mov_b32 v{TMP}, {hex(OOB)}')
    A(f'v_mov_b32 v{TMP+1}, {hex(OOB)}')
    A(f'v_mov_b32 v{TMP+2}, {hex(OOB)}')
    A(f'v_mov_b32 v{TMP+3}, {hex(OOB)}')
    A(f'v_lshlrev_b32 v{TMP+4}, 4, v0')
    A(f'ds_write_b128 v{TMP+4}, v[{TMP}:{TMP+3}] offset:{L_LIST}')
    A(f'v_mov_b32 v{TMP+5}, 0')
    A(f'v_lshlrev_b32 v{TMP+6}, 2, v{LANE}')
    A(f'ds_write_b32 v{TMP+6}, v{TMP+5}')
    A(f's_cmp_eq_u32 s{sWIN}, -1')
    A('s_cbranch_scc1 K3_PUSH')
    A('s_waitcnt vmcnt(0)')
    A(f'v_lshrrev_b32 v{CNTV}, 16, v{CELL}')
    A(f'v_and_b32 v{TMP}, 0xffff, v{CELL}')
    A(f'v_and_b32 v{TMP+1}, 3, v0')
    A(f'v_lshlrev_b32 v{TMP+1}, 2, v{TMP+1}')
    A(f'v_add_u32 v{TMP+1}, s{sWIN}, v{TMP+1}')
    A(f'v_add_u32 v{TMP+2}, v{TMP}, v{TMP+1}')
    A(f'v_lshl_add_u32 v{TMP+2}, v{TMP+2}, 2, v{EOFF}')
    for e in range(8):
        off = e if e < 4 else 16 + e - 4
        A(f'v_add_u32 v{TMP+3}, {off}, v{TMP+1}')
        A(f'v_cmp_lt_u32 s[{sMASK+2*e}:{sMASK+2*e+1}], v{TMP+3}, v{CNTV}')
    A(f'v_mov_b32 v{TMP+4}, {hex(OOB)}')
    A(f'v_cndmask_b32 v{TMP+5}, v{TMP+4}, v{TMP+2}, s[{sMASK}:{sMASK+1}]')
    A(f'v_cndmask_b32 v{TMP+6}, v{TMP+4}, v{TMP+2}, s[{sMASK+8}:{sMASK+9}]')
    A(f'buffer_load_dwordx4 v[{ENT}:{ENT+3}], v{TMP+5}, s[{sENT}:{sENT+3}], 0 offen')
    A(f'buffer_load_dwordx4 v[{ENT+4}:{ENT+7}], v{TMP+6}, s[{sENT}:{sENT+3}], 0 offen offset:64')
    A(f's_cmp_eq_u32 s{sFIRST}, 0')
    A('s_cbranch_scc1 K3_NOPART')
    for s in range(8):
        if s == 7:
            A(f'v_cndmask_b32 v{TX+6}, v{TMP+4}, v{TX+6}, s[{sT+10}:{sT+11}]')
            A(f'v_cndmask_b32 v{TX+7}, v{TMP+4}, v{TX+7}, s[{sT+10}:{sT+11}]')
        A(f'buffer_load_dwordx2 v[{PM+2*s}:{PM+2*s+1}], v{TX+6}, s[{sML}:{sML+3}], 0 offen')
        A(f'buffer_load_dwordx4 v[{PD+4*s}:{PD+4*s+3}], v{TX+7}, s[{sP}:{sP+3}], 0 offen')
        if s < 7:
            A(f'v_add_u32 v{TX+6}, 2048, v{TX+6}')
            A(f'v_add_u32 v{TX+7}, 0x10000, v{TX+7}')
    A('s_waitcnt vmcnt(16)')
    A('s_branch K3_PUSH')
    A.label('K3_NOPART')
    A('s_waitcnt vmcnt(0)')
    A.label('K3_PUSH')
    A('s_waitcnt lgkmcnt(0)')
    A('s_barrier')
    A(f'v_mov_b32 v{TMP+7}, 1')
    def push(es):
        for e in es:
            A(f'v_lshrrev_b32 v{TMP+e%4}, 22, v{ENT+e}')
            A(f'v_and_b32 v{TMP+e%4}, 0xfc, v{TMP+e%4}')
            A(f's_mov_b64 exec, s[{sMASK+2*e}:{sMASK+2*e+1}]')
            A(f'ds_add_rtn_u32 v{SLOT+e}, v{TMP+e%4}, v{TMP+7}')
            A('s_mov_b64 exec, -1')
        for e in es:
            A(f's_waitcnt lgkmcnt({es[-1]-e if False else 0})') if e == es[0] else None
            A(f'v_lshlrev_b32 v{TMP+e%4}, 6, v{TMP+e%4}')
            A(f'v_lshl_add_u32 v{TMP+e%4}, v{SLOT+e}, 2, v{TMP+e%4}')
            A(f'v_and_b32 v{TMP+4}, 0xffffff, v{ENT+e}')
            A(f's_mov_b64 exec, s[{sMASK+2*e}:{sMASK+2*e+1}]')
            A(f'v_cmp_gt_u32 vcc, {CAP}, v{SLOT+e}')
            A(f's_andn2_b64 s[{sMASK+2*e}:{sMASK+2*e+1}], s[{sMASK+2*e}:{sMASK+2*e+1}], vcc')
            A('s_mov_b64 exec, vcc')
            A(f'ds_write_b32 v{TMP+e%4}, v{TMP+4} offset:{L_LIST}')
            A('s_mov_b64 exec, -1')
    push([0, 1, 2, 3])
    A(f's_or_b64 s[{sT+4}:{sT+5}], s[{sMASK+8}:{sMASK+9}], s[{sMASK+10}:{sMASK+11}]')
    A(f's_or_b64 s[{sT+4}:{sT+5}], s[{sT+4}:{sT+5}], s[{sMASK+12}:{sMASK+13}]')
    A(f's_or_b64 s[{sT+4}:{sT+5}], s[{sT+4}:{sT+5}], s[{sMASK+14}:{sMASK+15}]')
    A('s_cbranch_scc0 K3_PUSHED')
    push([4, 5, 6, 7])
    A.label('K3_PUSHED')
    A(f's_mov_b64 s[{sT+4}:{sT+5}], s[{sMASK}:{sMASK+1}]')
    for e in range(1, 8):
        A(f's_or_b64 s[{sT+4}:{sT+5}], s[{sT+4}:{sT+5}], s[{sMASK+2*e}:{sMASK+2*e+1}]')
    A(f'v_mov_b32 v{TMP}, {L_FLAG}')
    A('s_cbranch_scc0 K3_NOFA')
    A(f'ds_write_b32 v{TMP}, v{TMP+7}')
    A.label('K3_NOFA')
    A(f's_cmp_eq_u32 s{sWIN}, -1')
    A(f's_cselect_b32 s{sWIN}, s{sT+6}, s{sWIN}')
    A(f's_add_u32 s{sT+7}, s{sWIN}, 32')
    A(f'v_cmp_lt_u32 vcc, s{sT+7}, v{CNTV}')
    A('s_nop 4')
    A('s_cbranch_vccz K3_NOFB')
    A(f'ds_write_b32 v{TMP}, v{TMP+7} offset:4')
    A.label('K3_NOFB')
    A('s_waitcnt lgkmcnt(0)')
    A('s_barrier')
    A(f'ds_read_b32 v{TMP+6}, v{NODEA}')
    A(f'ds_read_b64 v[{SLOT}:{SLOT+1}], v{TMP}')
    issue_batch(A, SA, 0)
    A(f'v_readlane_b32 s{sMAX}, v{TMP+6}, 0')
    A(f'v_readlane_b32 s{sT+4}, v{TMP+6}, 16')
    A(f'v_readlane_b32 s{sT+5}, v{TMP+6}, 32')
    A(f'v_readlane_b32 s{sT+7}, v{TMP+6}, 48')
    A(f'v_readfirstlane_b32 s{sT+8}, v{SLOT}')
    A(f'v_readfirstlane_b32 s{sT+9}, v{SLOT+1}')
    A(f's_max_u32 s{sMAX}, s{sMAX}, s{sT+4}')
    A(f's_max_u32 s{sT+5}, s{sT+5}, s{sT+7}')
    A(f's_max_u32 s{sMAX}, s{sMAX}, s{sT+5}')
    A(f's_cmp_eq_u32 s{sFIRST}, 0')
    A('s_cbranch_scc1 K3_NOCOMB')
    A('s_waitcnt vmcnt(16)')
    A(f'v_mov_b32 v{TMP}, 0xff800000')
    A(f'v_cndmask_b32 v{PM+14}, v{TMP}, v{PM+14}, s[{sT+10}:{sT+11}]')
    A(f'v_max3_f32 v{TMP} , v{PM}, v{PM+2}, v{PM+4}')
    A(f'v_max3_f32 v{TMP} , v{TMP}, v{PM+6}, v{PM+8}')
    A(f'v_max3_f32 v{TMP} , v{TMP}, v{PM+10}, v{PM+12}')
    A(f'v_max_f32 v{TMP} , v{TMP}, v{PM+14}')
    for s in range(8):
        A(f'v_sub_f32 v{PM+2*s}, v{PM+2*s}, v{TMP}')
    for s in range(8):
        A(f'v_exp_f32 v{PM+2*s}, v{PM+2*s}')
    A('s_nop 0')
    A(f'v_mul_f32 v{TMP+1}, v{PM}, v{PM+1}')
    for s in range(1, 8):
        A(f'v_fmac_f32 v{TMP+1}, v{PM+2*s}, v{PM+2*s+1}')
    A(f'v_rcp_f32 v{TMP+1}, v{TMP+1}')
    A('s_nop 0')
    for s in range(8):
        A(f'v_mul_f32 v{PM+2*s}, v{PM+2*s}, v{TMP+1}')
    for s in range(8):
        for j in range(4):
            A(f'v_lshlrev_b32 v{TMP+4}, 16, v{PD+4*s+j}')
            A(f'v_and_b32 v{TMP+5}, 0xffff0000, v{PD+4*s+j}')
            op = 'v_mul_f32' if s == 0 else 'v_fmac_f32'
            A(f'{op} v{ZA+2*j}, v{TMP+4}, v{PM+2*s}')
            A(f'{op} v{ZA+2*j+1}, v{TMP+5}, v{PM+2*s}')
    for j in range(4):
        A(f'v_cvt_pk_bf16_f32 v{TMP+j}, v{ZA+2*j}, v{ZA+2*j+1}')
    A(f'ds_write_b128 v{TX+1}, v[{TMP}:{TMP+3}] offset:{L_Z}')
    A('s_waitcnt lgkmcnt(0)')
    A.label('K3_NOCOMB')
    issue_batch(A, SB, 1)
    acc_batch(A, SA, 16)
    A(f's_cmp_gt_u32 s{sMAX}, 32')
    A('s_cbranch_scc1 K3_G3')
    acc_batch(A, SB, 0)
    A('s_branch K3_GDONE')
    A.label('K3_G3')
    issue_batch(A, SA, 2)
    acc_batch(A, SB, 16)
    A(f's_cmp_gt_u32 s{sMAX}, 48')
    A('s_cbranch_scc1 K3_G4')
    acc_batch(A, SA, 0)
    A('s_branch K3_GDONE')
    A.label('K3_G4')
    issue_batch(A, SB, 3)
    acc_batch(A, SA, 16)
    acc_batch(A, SB, 0)
    A.label('K3_GDONE')
    A(f's_mov_b32 s{sFIRST}, 0')
    A(f's_or_b32 s{sT+4}, s{sT+8}, s{sT+9}')
    A('s_cbranch_scc0 K3_FINAL')
    A('s_barrier')
    A(f's_mov_b32 s{sT+6}, s{sWIN}')
    A(f's_add_u32 s{sT+7}, s{sWIN}, 32')
    A(f's_cmp_lg_u32 s{sT+8}, 0')
    A(f's_cselect_b32 s{sWIN}, -1, s{sT+7}')
    A('s_branch K3_RESET')
    A.label('K3_FINAL')
    A(f's_mul_i32 s{sT+7}, s2, 40')
    A(f'v_lshrrev_b32 v{TMP}, 4, v0')
    A(f'v_add_u32 v{TMP+1}, s{sT+7}, v{TMP}')
    A(f'v_lshlrev_b32 v{TMP+1}, 1, v{TMP+1}')
    A(f'buffer_load_ushort v{TMP+2}, v{TMP+1}, s[{sDEG}:{sDEG+3}], 0 offen')
    A(f's_lshl_b32 s{sT+4}, s{sWAVE}, 13')
    A(f'v_lshl_add_u32 v{TMP+3}, v{LANE}, 4, s{sT+4}')
    for ks in range(8):
        if ks == 4:
            A(f'v_add_u32 v{TMP+3}, 4096, v{TMP+3}')
        A(f'buffer_load_dwordx4 v[{SA+4*ks}:{SA+4*ks+3}], v{TMP+3}, s[{sW}:{sW+3}], 0 offen offset:{(ks%4)*1024}')
    A(f'v_and_b32 v{TMP+4}, 15, v{LANE}')
    A(f'v_lshrrev_b32 v{TMP+5}, 4, v{LANE}')
    A(f'v_add_u32 v{TMP+6}, s{sT+7}, v{TMP+4}')
    A(f'v_lshlrev_b32 v{TMP+6}, 8, v{TMP+6}')
    A(f'v_lshl_add_u32 v{TMP+6}, v{TMP+5}, 3, v{TMP+6}')
    A(f's_lshl_b32 s{sT+4}, s{sWAVE}, 5')
    A(f'v_add_u32 v{ENT}, s{sT+4}, v{TMP+6}')
    A(f'v_add_u32 v{ENT+1}, 4096, v{ENT}')
    A(f'v_add_u32 v{ENT+2}, 8192, v{ENT}')
    A(f'v_cmp_gt_u32 vcc, 8, v{TMP+4}')
    A(f'v_mov_b32 v{TMP+7}, {hex(OOB)}')
    A('s_nop 0')
    A(f'v_cndmask_b32 v{ENT+2}, v{TMP+7}, v{ENT+2}, vcc')
    for rt in range(3):
        A(f'buffer_load_dwordx2 v[{SLOT+2*rt}:{SLOT+2*rt+1}], v{ENT+rt}, s[{sX}:{sX+3}], 0 offen')
    A(f'v_mul_u32_u24 v{TMP}, {ZP}, v{TMP}')
    A(f'v_add_u32 v{TMP}, v{TMP}, v{CC}')
    A('s_waitcnt vmcnt(11)')
    A(f'v_lshlrev_b32 v{TMP+2}, 16, v{TMP+2}')
    for i in range(8):
        A(f'v_mul_f32 v{ACC+i}, v{ACC+i}, v{TMP+2}')
    for j in range(4):
        A(f'v_cvt_pk_bf16_f32 v{ACC+j}, v{ACC+2*j}, v{ACC+2*j+1}')
    A(f'ds_write_b128 v{TMP}, v[{ACC}:{ACC+3}] offset:{L_Z+256}')
    A('s_waitcnt lgkmcnt(0)')
    A('s_barrier')
    A(f's_cmp_ge_u32 s{sWAVE}, 8')
    A('s_cbranch_scc1 K3_END')
    A(f'v_mul_u32_u24 v{TMP}, {ZP}, v{TMP+4}')
    A(f'v_lshl_add_u32 v{TMP}, v{TMP+5}, 4, v{TMP}')
    BF = 72
    def zread(i):
        rt, ks = divmod(i, 8)
        b = BF + i * 4
        A(f'ds_read_b128 v[{b}:{b+3}], v{TMP} offset:{L_Z + rt*16*ZP + ks*64}')
    DD = 24
    def zmm(rt):
        for ks in range(8):
            b = BF + (rt * 8 + ks) * 4
            d = DD + 4 * rt
            c = '0' if ks == 0 else f'v[{d}:{d+3}]'
            A(f'v_mfma_f32_16x16x32_bf16 v[{d}:{d+3}], v[{SA+4*ks}:{SA+4*ks+3}], v[{b}:{b+3}], {c}')
    for i in range(12): zread(i)
    A('s_waitcnt vmcnt(3) lgkmcnt(4)')
    for i in range(12, 24): zread(i)
    zmm(0)
    A('s_waitcnt lgkmcnt(8)')
    zmm(1)
    A('s_waitcnt lgkmcnt(0)')
    zmm(2)
    A('s_waitcnt vmcnt(0)')
    A('s_nop 7')
    for rt in range(3):
        d = DD + 4 * rt
        x = SLOT + 2 * rt
        for j in range(2):
            A(f'v_lshlrev_b32 v{TMP+6}, 16, v{x+j}')
            A(f'v_and_b32 v{TMP+7}, 0xffff0000, v{x+j}')
            A(f'v_add_f32 v{d+2*j}, v{d+2*j}, v{TMP+6}')
            A(f'v_add_f32 v{d+2*j+1}, v{d+2*j+1}, v{TMP+7}')
            A(f'v_cvt_pk_bf16_f32 v{x+j}, v{d+2*j}, v{d+2*j+1}')
        A(f'buffer_store_dwordx2 v[{x}:{x+1}], v{ENT+rt}, s[{sO}:{sO+3}], 0 offen')
    A.label('K3_END')
    A('s_endpgm')
    kernel_desc(A, K3_NAME, 168, 168, 96)
```

```python
import sys
sys.path.insert(0, 'dev')
from asmlib import *
from consts import *
import k1, k2, k3

def build():
    check_partition()
    A = Asm()
    hdr = open('standalone__hybrid_graph_tf_graphgps__graph.s.ref').read().split('\n')
    for l in hdr:
        if l.startswith('; Override') or l.startswith('; grid=') or '@launch' in l:
            continue
        if not l.startswith(';'):
            break
        A.raw(l)
    A.raw(f'; @launch kernel={k1.K1_NAME} grid=({k1.K1_GRID},1,1) block=(256,1,1) lds={k1.K1_LDS}')
    A.raw(f'; @launch kernel={k2.K2_NAME} grid=({NWG2},1,1) block=(256,1,1) lds={k2.K2_LDS}')
    A.raw(f'; @launch kernel={k3.K3_NAME} grid=({k3.K3_GRID},1,1) block=({k3.K3_BLOCK},1,1) lds={k3.K3_LDS}')
    A.raw('.amdgcn_target "amdgcn-amd-amdhsa--gfx950"')
    k1.gen_k1(A)
    k2.gen_k2(A)
    k3.gen_k3(A)
    return A.text()

if __name__ == '__main__':
    out = sys.argv[1] if len(sys.argv) > 1 else 'standalone__hybrid_graph_tf_graphgps__graph.s'
    open(out, 'w').write(build())
    print('wrote', out)
```
